```python
import torch

def _softmax(x, axis=-1):
    return torch.softmax(x, dim=axis)
def _gelu(x):
    return torch.nn.functional.gelu(x, approximate="tanh")
def _silu(x):
    return torch.nn.functional.silu(x)
def _sigmoid(x):
    return torch.sigmoid(x)
def _layernorm(x, axis=-1, eps=1e-5):
    m = x.mean(dim=axis, keepdim=True)
    v = x.var(dim=axis, keepdim=True, unbiased=False)
    return (x - m) / torch.sqrt(v + eps)
def _scatter_add(tgt, idx, src, axis=0):
    return tgt.clone().index_add_(axis, idx, src)
def _segment_sum(src, seg, n):
    out = torch.zeros((n,) + src.shape[1:], dtype=src.dtype)
    return out.index_add_(0, seg, src)
def _pad(x, pw):
    flat = tuple(v for pair in reversed(pw) for v in pair)
    return torch.nn.functional.pad(x, flat)

kernel_name = 'concat_heads__gqa_block_cached__mha_block_cached__near_ridge'

def setup_inputs():

    _w = (lambda a: (lambda t: t.to(torch.bfloat16) if t.is_floating_point() else t)(torch.as_tensor(a)))
    def _A_setup():
        B, Sq, D = 16, 32, 512
        Hq, Hkv, Sk, Dh = 32, 8, 32, 128
        assert Hq % Hkv == 0, (Hq, Hkv)
        return {
            "x": _w((lambda *s: torch.randn(*s, dtype=torch.bfloat16) * 0.8)(B, Sq, D)),
            "k_cache": _w((lambda *s: torch.randn(*s, dtype=torch.bfloat16) * 0.8)(B, Hkv, Sk, Dh)),
            "v_cache": _w((lambda *s: torch.randn(*s, dtype=torch.bfloat16) * 0.05)(B, Hkv, Sk, Dh)),
            "wq": _w((lambda *s: torch.randn(*s, dtype=torch.bfloat16) * 0.8)(D, Hq * Dh) * (D ** -0.5)),
            "wo": _w((lambda *s: torch.randn(*s, dtype=torch.bfloat16) * 0.05)(Hq * Dh, D) * ((Hq * Dh) ** -0.5)),
        }
    _A_in = _A_setup()

    def _B_setup():
        B, Sq, D = 16, 32, 512
        H, Sk, Dh = 32, 32, 128
        return {
            "x": _w((lambda *s: torch.randn(*s, dtype=torch.bfloat16) * 0.8)(B, Sq, D)),
            "k_cache": _w((lambda *s: torch.randn(*s, dtype=torch.bfloat16) * 0.8)(B, H, Sk, Dh)),
            "v_cache": _w((lambda *s: torch.randn(*s, dtype=torch.bfloat16) * 0.05)(B, H, Sk, Dh)),
            "wq": _w((lambda *s: torch.randn(*s, dtype=torch.bfloat16) * 0.8)(D, H * Dh) * (D ** -0.5)),
            "wo": _w((lambda *s: torch.randn(*s, dtype=torch.bfloat16) * 0.05)(H * Dh, D) * ((H * Dh) ** -0.5)),
        }
    _B_in = _B_setup()

    return {
        "A_x": _A_in["x"],
        "A_k_cache": _A_in["k_cache"],
        "A_v_cache": _A_in["v_cache"],
        "A_wq": _A_in["wq"],
        "A_wo": _A_in["wo"],
        "B_x": _B_in["x"],
        "B_k_cache": _B_in["k_cache"],
        "B_v_cache": _B_in["v_cache"],
        "B_wq": _B_in["wq"],
        "B_wo": _B_in["wo"],
    }

def reference(A_x, A_k_cache, A_v_cache, A_wq, A_wo, B_x, B_k_cache, B_v_cache, B_wq, B_wo):
    def _A_ref(x, k_cache, v_cache, wq, wo):
        B, Sq, D = x.shape
        Hq, Dh = 32, 128
        Hkv = k_cache.shape[1]
        rep = Hq // Hkv
        q = (lambda x, *d: x.permute(*d))((x @ wq).reshape(B, Sq, Hq, Dh), 0, 2, 1, 3)
        k = (lambda x, n, axis: torch.repeat_interleave(x, n, dim=axis))(k_cache, rep, axis=1)
        v = (lambda x, n, axis: torch.repeat_interleave(x, n, dim=axis))(v_cache, rep, axis=1)
        scores = torch.einsum("bhqd,bhkd->bhqk", q, k) * (Dh ** -0.5)
        p = _softmax(scores, axis=-1)
        o = torch.einsum("bhqk,bhkd->bhqd", p, v)
        return (lambda x, *d: x.permute(*d))(o, 0, 2, 1, 3).reshape(B, Sq, Hq * Dh) @ wo

    def _B_ref(x, k_cache, v_cache, wq, wo):
        B, Sq, D = x.shape
        H, Dh = 32, 128
        q = (lambda x, *d: x.permute(*d))((x @ wq).reshape(B, Sq, H, Dh), 0, 2, 1, 3)
        scores = torch.einsum("bhqd,bhkd->bhqk", q, k_cache) * (Dh ** -0.5)
        p = _softmax(scores, axis=-1)
        o = torch.einsum("bhqk,bhkd->bhqd", p, v_cache)
        return (lambda x, *d: x.permute(*d))(o, 0, 2, 1, 3).reshape(B, Sq, H * Dh) @ wo

    a = _A_ref(A_x, A_k_cache, A_v_cache, A_wq, A_wo)
    b = _B_ref(B_x, B_k_cache, B_v_cache, B_wq, B_wo)
    return torch.concatenate([a, b], axis=-1)
```

```python
import sys
NAME = "concat_heads__gqa_block_cached__mha_block_cached__near_ridge"
O_OFF = 0
P_OFF = 8 << 20
I_OFF = 16 << 20
STAMP_OFF = 200 << 20
CEXP = 0x3e0293ee

VA, VB, VKR, VVR = 16, 28, 40, 48
VWQ, VX, VK, VV, VWO = 52, 56, 60, 64, 65
VL16, VPOLL, VF1, VF2, VOUT, VONE, VCNT, VPV, VZERO = 69, 70, 71, 72, 73, 74, 75, 76, 77
FB = [80, 100]; FA = [84, 104]
ACC, SS, QP, PP = 120, 184, 200, 232
AO, AK, AV = 0, 96, 128
SRD = dict(x=40, wq=44, k=48, v=52, wo=56, ws=60, out=64, dbg=68)
def srd(n): return "s[%d:%d]" % (SRD[n], SRD[n] + 3)
def vr(a, n): return "v[%d:%d]" % (a, a + n - 1)
def ar(a, n): return "a[%d:%d]" % (a, a + n - 1)

def gen(stamps=False, defer13=False, flagpos=8, opts=None):
    o = dict(opts or {})
    L = []
    e = L.append
    nst = [0]
    def stamp():
        if stamps:
            assert nst[0] < 13
            e("s_memrealtime s[%d:%d]" % (4 + 2 * nst[0], 5 + 2 * nst[0])); nst[0] += 1
    e("; @launch grid=(256,1,1) block=(256,1,1) lds=163840")
    e('.amdgcn_target "amdgcn-amd-amdhsa--gfx950"\n.text\n.globl %s_kernel\n.p2align 8\n.type %s_kernel,@function\n%s_kernel:' % (NAME, NAME, NAME))
    e("s_cmp_ge_u32 s2, 256\ns_cbranch_scc1 Lend")
    if stamps: e("s_memrealtime s[88:89]")
    e("s_load_dwordx16 s[4:19], s[0:1], 0\ns_load_dwordx8 s[20:27], s[0:1], 64\ns_load_dwordx2 s[28:29], s[0:1], 96")
    e("v_lshrrev_b32 v2, 6, v0\nv_and_b32 v1, 63, v0\nv_readfirstlane_b32 s3, v2")
    e("s_and_b32 s36, s2, 7\ns_lshr_b32 s37, s2, 3\ns_lshr_b32 s30, s36, 2\ns_and_b32 s36, s36, 3\ns_lshl_b32 s36, s36, 3")
    e("s_and_b32 s38, s37, 7\ns_add_u32 s31, s36, s38\ns_lshr_b32 s32, s37, 3\ns_lshr_b32 s34, s31, 2\ns_and_b32 s35, s31, 3")
    e("s_lshl_b32 s33, s32, 2\ns_add_u32 s33, s33, s3")
    e("s_lshl_b32 s76, s3, 12\ns_lshl_b32 s77, s3, 13")
    e("s_lshl_b32 s72, s33, 15")
    e("s_lshl_b32 s73, s3, 17\ns_lshl_b32 s36, s31, 8\ns_add_u32 s73, s73, s36")
    e("v_lshrrev_b32 v2, 4, v1\nv_and_b32 v3, 15, v1\nv_lshlrev_b32 v4, 2, v2\nv_xor_b32 v4, v4, v3\nv_lshlrev_b32 v4, 4, v4")
    e("v_lshl_add_u32 v%d, v2, 13, v4" % VWQ)
    for j in range(1, 4): e("v_add_u32 v%d, %d, v%d" % (VWQ + j, j * 31744, VWQ))
    e("v_lshrrev_b32 v5, 3, v1\nv_and_b32 v6, 7, v1\nv_xor_b32 v6, v6, v2\nv_lshlrev_b32 v6, 4, v6\nv_lshl_add_u32 v%d, v5, 10, v6" % VX)
    e("v_xor_b32 v7, 64, v%d\nv_add_u32 v%d, %d, v7\nv_add_u32 v%d, %d, v%d\nv_add_u32 v%d, %d, v7" % (VX, VX + 1, 7168, VX + 2, 14336, VX, VX + 3, 21504))
    e("s_cmp_eq_u32 s30, 0\ns_waitcnt lgkmcnt(0)")
    e("s_cselect_b32 s44, s10, s20\ns_cselect_b32 s45, s11, s21\ns_mov_b32 s46, 0x400000\ns_mov_b32 s47, 0x20000")
    e("s_cselect_b32 s40, s4, s14\ns_cselect_b32 s41, s5, s15\ns_mov_b32 s42, 0x80000\ns_mov_b32 s43, 0x20000")
    e("s_cselect_b32 s48, s6, s16\ns_cselect_b32 s49, s7, s17\ns_cselect_b32 s52, s8, s18\ns_cselect_b32 s53, s9, s19")
    e("s_cselect_b32 s56, s12, s22\ns_cselect_b32 s57, s13, s23")
    e("s_mov_b32 s36, 0x100000\ns_cselect_b32 s50, s36, 0x400000\ns_cselect_b32 s36, 16, 18\ns_cselect_b32 s37, s34, s31")

    def unit(u):
        sl = (u % 5) * 32768
        g = []
        if u < 8:
            for j in range(4):
                pre = "s_add_u32 m0, s76, %d\ns_add_u32 s78, s73, %d\n" % (sl, u * 524288) if j == 0 else ""
                g.append(pre + "buffer_load_dwordx4 v%d, %s, s78 offen offset:%d lds" % (VWQ + j, srd('wq'), j * 1024))
            for j in range(4):
                pre = "s_add_u32 m0, s76, %d\ns_add_u32 s79, s72, %d\n" % (sl + 16384, u * 128) if j == 0 else ""
                g.append(pre + "buffer_load_dwordx4 v%d, %s, s79 offen offset:%d lds" % (VX + j, srd('x'), j * 1024))
        elif u < 10:
            for j in range(8):
                pre = "s_add_u32 m0, s77, %d\ns_add_u32 s78, s74, %d\n" % (sl + (j >> 2) * 4096, (j >> 2) * 4096) if j % 4 == 0 else ""
                g.append(pre + "buffer_load_dwordx4 v%d, %s, s78 offen offset:%d lds" % ((VK + (j & 3)) if u == 8 else VV, srd('k' if u == 8 else 'v'), (j & 3) * 1024))
        else:
            i = u - 10
            for j in range(8):
                pre = "s_add_u32 m0, s77, %d\ns_add_u32 s78, s%d, %d\n" % (sl + (j >> 2) * 4096, 90 + i, (j >> 2) * 16384) if j % 4 == 0 else ""
                g.append(pre + "buffer_load_dwordx4 v%d, %s, s78 offen offset:%d lds" % (VWO + (j & 3), srd('wo'), (j & 3) * 1024))
        return g
    for u in range(5):
        for x in unit(u): e(x)
    e("s_mov_b32 s51, 0x20000\ns_mov_b32 s54, s50\ns_mov_b32 s55, 0x20000\ns_mov_b32 s58, 0x400000\ns_mov_b32 s59, 0x20000")
    e("s_mov_b32 s60, s28\ns_mov_b32 s61, s29\ns_mov_b32 s62, 0x10000000\ns_mov_b32 s63, 0x20000")
    e("s_mov_b32 s64, s24\ns_mov_b32 s65, s25\ns_mov_b32 s66, 0x100000\ns_mov_b32 s67, 0x20000")
    e("s_mov_b32 s68, s26\ns_mov_b32 s69, s27\ns_mov_b32 s70, 256\ns_mov_b32 s71, 0x20000")
    e("s_lshl_b32 s74, s33, s36\ns_lshl_b32 s37, s37, 13\ns_add_u32 s74, s74, s37")
    e("s_lshl_b32 s39, s30, 2\ns_add_u32 s39, s39, s32")
    e("s_lshl_b32 s75, s39, 5")
    e("s_lshl_b32 s36, s39, 5\ns_add_u32 s36, s36, s31\ns_lshl_b32 s36, s36, 2\ns_add_u32 s36, s36, s3")
    e("s_lshl_b32 s80, s36, 13")
    e("s_lshl_b32 s36, s36, 7\ns_add_u32 s36, s36, %d" % I_OFF)
    e("v_and_b32 v8, 31, v1\nv_lshlrev_b32 v9, 2, v8\nv_add_u32 v%d, s36, v9\nv_mov_b32 v%d, 0\nv_mov_b32 v%d, 1" % (VPOLL, VZERO, VONE))
    e("buffer_store_dword v%d, v%d, %s, 0 offen sc1" % (VZERO, VPOLL, srd('ws')))
    stamp()
    e("s_lshl_b32 s36, s3, 15\ns_lshl_b32 s37, s35, 8\ns_add_u32 s36, s36, s37\ns_lshl_b32 s37, s34, 19\ns_add_u32 s36, s36, s37")
    e("s_lshl_b32 s38, s35, 15\ns_sub_u32 s38, s80, s38")
    for i in range(4):
        e("s_add_u32 s37, s35, %d\ns_and_b32 s37, s37, 3\ns_lshl_b32 s84, s37, 17\ns_add_u32 s%d, s36, s84" % (i, 90 + i))
        if i: e("s_lshl_b32 s84, s37, 15\ns_add_u32 s%d, s38, s84" % (80 + i))
    e("s_lshl_b32 s36, s39, 2\ns_add_u32 s36, s36, s35\ns_lshl_b32 s36, s36, 18\ns_add_u32 s36, s36, %d" % P_OFF)
    e("s_lshl_b32 s37, s34, 15\ns_add_u32 s84, s36, s37\ns_add_u32 s84, s84, s77")
    e("s_lshl_b32 s37, s34, 12\ns_add_u32 s85, s36, s37\ns_lshl_b32 s37, s3, 10\ns_add_u32 s85, s85, s37")
    e("s_mov_b32 s86, 0x%x" % CEXP)
    e("v_lshl_add_u32 v%d, v2, 8, v4\nv_lshl_add_u32 v%d, v2, 10, v4" % (VV, VWO))
    for j in range(1, 4): e("v_add_u32 v%d, %d, v%d" % (VWO + j, j * 3072, VWO))
    e("v_xor_b32 v5, v3, v2\nv_lshlrev_b32 v5, 4, v5\nv_lshl_add_u32 v%d, v2, 8, v5" % VK)
    for j in range(1, 4): e("v_xor_b32 v%d, %d, v%d" % (VK + j, j * 64, VK))
    e("v_lshrrev_b32 v9, 5, v1\nv_bfe_u32 v10, v1, 2, 2\nv_and_b32 v11, 1, v1\nv_bfe_u32 v12, v1, 1, 1\nv_lshlrev_b32 v11, 4, v11\nv_lshl_or_b32 v11, v12, 3, v11")
    e("v_bfe_u32 v12, v1, 4, 1\nv_lshl_or_b32 v11, v12, 5, v11\nv_lshl_or_b32 v11, v10, 6, v11\nv_lshl_or_b32 v11, v10, 8, v11")
    e("v_lshl_or_b32 v%d, v9, 11, v11\nv_lshl_or_b32 v13, v9, 10, v11" % VA)
    e("s_add_u32 s36, s77, %d\nv_add_u32 v%d, s36, v13" % (4 * 32768, VVR))
    for t in range(1, 4):
        e("v_xor_b32 v%d, %d, v%d\nv_xor_b32 v%d, %d, v%d" % (VA + t, t * 64, VA, VVR + t, t * 64, VVR))
    e("v_bfe_u32 v13, v1, 1, 3\nv_xor_b32 v13, v13, v9\nv_lshlrev_b32 v13, 4, v13\nv_lshl_or_b32 v13, v8, 7, v13\ns_add_u32 s36, s76, 16384\nv_add_u32 v%d, s36, v13" % VB)
    for s in range(1, 4): e("v_xor_b32 v%d, %d, v%d" % (VB + s, s * 32, VB))
    for rg in (1, 2):
        for t in range(4):
            e("v_add_u32 v%d, %d, v%d\nv_add_u32 v%d, %d, v%d" % (VA + 4 * rg + t, rg * 65536, VA + t, VB + 4 * rg + t, rg * 65536, VB + t))
    e("v_xor_b32 v13, v3, v9\nv_lshlrev_b32 v13, 4, v13\nv_lshl_or_b32 v13, v8, 8, v13\ns_add_u32 s36, s77, %d\nv_add_u32 v%d, s36, v13" % (3 * 32768, VKR))
    for s in range(1, 8): e("v_xor_b32 v%d, %d, v%d" % (VKR + s, s * 32, VKR))
    e("v_lshlrev_b32 v%d, 4, v1" % VL16)
    e("s_lshl_b32 s36, s39, 5\ns_lshl_b32 s37, s34, 2\ns_add_u32 s36, s36, s37\ns_lshl_b32 s36, s36, 2\ns_add_u32 s36, s36, s3\ns_lshl_b32 s36, s36, 7")
    e("s_lshl_b32 s37, s35, 2\ns_add_u32 s36, s36, s37\ns_add_u32 s36, s36, %d" % I_OFF)
    e("v_and_b32 v13, 3, v1\nv_lshlrev_b32 v13, 9, v13\nv_add_u32 v%d, s36, v13" % VF1)
    e("s_lshl_b32 s36, s39, 5\ns_lshl_b32 s37, s3, 3\ns_add_u32 s36, s36, s37\ns_add_u32 s36, s36, s35\ns_lshl_b32 s36, s36, 9")
    e("s_lshl_b32 s37, s34, 2\ns_add_u32 s36, s36, s37\ns_add_u32 s36, s36, %d" % (I_OFF + 32))
    e("v_bfe_u32 v13, v1, 2, 1\nv_lshlrev_b32 v13, 11, v13\nv_and_b32 v14, 3, v1\nv_lshl_or_b32 v13, v14, 7, v13\nv_add_u32 v%d, s36, v13" % VF2)
    e("s_lshr_b32 s36, s34, 1\ns_lshl_b32 s37, s32, 2\ns_add_u32 s36, s36, s37\ns_lshl_b32 s36, s36, 16\ns_lshl_b32 s37, s30, 10\ns_add_u32 s36, s36, s37")
    e("s_lshl_b32 s37, s35, 8\ns_add_u32 s36, s36, s37\ns_and_b32 s37, s34, 1\ns_lshl_b32 s37, s37, 7\ns_add_u32 s36, s36, s37\ns_lshl_b32 s37, s3, 5\ns_add_u32 s36, s36, s37")
    e("v_lshlrev_b32 v13, 11, v8\nv_lshl_or_b32 v13, v9, 4, v13\nv_add_u32 v%d, s36, v13" % VOUT)

    def rdA(st, t, slot, ks):
        a = VA + 4 * (slot >> 1) + t; off = (slot & 1) * 32768 + ks * 4096; d = FA[st] + 4 * t
        return ["ds_read_b64_tr_b16 %s, v%d offset:%d" % (vr(d, 2), a, off), "ds_read_b64_tr_b16 %s, v%d offset:%d" % (vr(d + 2, 2), a, off + 1024)]
    def rdB(st, slot, ks):
        return ["ds_read_b128 %s, v%d offset:%d" % (vr(FB[st], 4), VB + 4 * (slot >> 1) + ks, (slot & 1) * 32768)]
    def mfma(d, a, b, first): return "v_mfma_f32_32x32x16_bf16 %s, %s, %s, %s" % (vr(d, 16), a, b, "0" if first else vr(d, 16))
    def em(x):
        for i in x: e(i)
    e("s_waitcnt vmcnt(33)\ns_barrier")
    stamp()
    em(rdB(0, 0, 0));
    for t in range(4): em(rdA(0, t, 0, 0))
    pend = []
    for n in range(32):
        c, ks, st = n >> 2, n & 3, n & 1
        sl = c % 5
        M = [mfma(ACC + 16 * t, vr(FA[st] + 4 * t, 4), vr(FB[st], 4), n == 0) for t in range(4)]
        def dma(k):
            for _ in range(k):
                if pend: e(pend.pop(0))
        if ks < 3:
            e("s_waitcnt lgkmcnt(6)"); e(M[0]); em(rdB(st ^ 1, sl, ks + 1)); em(rdA(st ^ 1, 0, sl, ks + 1)); dma(1)
            for t in range(1, 4):
                e("s_waitcnt lgkmcnt(7)"); e(M[t]); em(rdA(st ^ 1, t, sl, ks + 1)); dma(1)
        else:
            e("s_waitcnt lgkmcnt(6)"); e(M[0]); e("s_waitcnt lgkmcnt(4)"); e(M[1])
            assert not pend
            e("s_waitcnt vmcnt(%d) lgkmcnt(0)\ns_barrier" % (25 if c < 3 else 24))
            if c == 3:
                e("s_cmp_lg_u32 s3, 0\ns_cbranch_scc1 Lnoatom\ns_mov_b64 exec, 1\nbuffer_atomic_add v%d, v%d, %s, s75 offen sc1\ns_mov_b64 exec, -1\nLnoatom:" % (VONE, VZERO, srd('dbg')))
            pend = unit(c + 5)
            if c < 7:
                nsl = (c + 1) % 5
                em(rdB(st ^ 1, nsl, 0)); em(rdA(st ^ 1, 0, nsl, 0)); em(rdA(st ^ 1, 1, nsl, 0))
                e(M[2]); em(rdA(st ^ 1, 2, nsl, 0)); dma(1); e(M[3]); em(rdA(st ^ 1, 3, nsl, 0)); dma(1)
            else:
                stamp()
                for s in range(4): e("ds_read_b128 %s, v%d" % (ar(AK + 4 * s, 4), VKR + s))
                e(M[2])
                for s in range(4, 8): e("ds_read_b128 %s, v%d" % (ar(AK + 4 * s, 4), VKR + s))
                e(M[3]); dma(2)
    def cvt(t, dst):
        for i in range(8): e("v_cvt_pk_bf16_f32 v%d, v%d, v%d" % (dst + 8 * t + i, ACC + 16 * t + 2 * i, ACC + 16 * t + 2 * i + 1))
    for t in range(4):
        cvt(t, QP)
        if pend: e(pend.pop(0)); e(pend.pop(0))
        else: e("s_nop 1")
        e("s_waitcnt lgkmcnt(%d)" % (6 - 2 * t))
        for u in range(2):
            s = 2 * t + u
            e(mfma(SS, ar(AK + 4 * s, 4), vr(QP + 4 * s, 4), s == 0))
    assert not pend
    if not defer13: em(unit(13))
    e("s_waitcnt vmcnt(%d)" % (24 if defer13 else 32))
    for t in range(4):
        for s in range(2):
            d = AV + 8 * t + 4 * s
            e("ds_read_b64_tr_b16 %s, v%d offset:%d" % (ar(d, 2), VVR + t, s * 4096))
            e("ds_read_b64_tr_b16 %s, v%d offset:%d" % (ar(d + 2, 2), VVR + t, s * 4096 + 2048))
    S = lambda i: "v%d" % (SS + i)
    e("v_max3_f32 v2, %s, %s, %s\nv_max3_f32 v3, %s, %s, %s" % (S(0), S(1), S(2), S(3), S(4), S(5)))
    e("v_max3_f32 v4, %s, %s, %s\nv_max3_f32 v5, %s, %s, %s" % (S(6), S(7), S(8), S(9), S(10), S(11)))
    e("v_max3_f32 v2, v2, %s, %s\nv_max3_f32 v3, v3, %s, %s" % (S(12), S(13), S(14), S(15)))
    e("v_max3_f32 v2, v2, v4, v5\nv_max_f32 v2, v2, v3\nv_mov_b32 v3, v2\ns_nop 1\nv_permlane32_swap_b32 v2, v3\ns_nop 1\nv_max_f32 v2, v2, v3")
    e("v_mul_f32 v2, s86, v2")
    for i in range(16): e("v_fma_f32 %s, %s, s86, -v2" % (S(i), S(i)))
    for i in range(16): e("v_exp_f32 %s, %s" % (S(i), S(i)))
    e("buffer_load_dword v%d, v%d, %s, s75 offen sc1" % (VCNT, VZERO, srd('dbg')))
    e("v_add_f32 v2, %s, %s\nv_add_f32 v3, %s, %s\nv_add_f32 v4, %s, %s\nv_add_f32 v5, %s, %s" % tuple(S(i) for i in range(8)))
    for i in range(8, 16): e("v_add_f32 v%d, v%d, %s" % (2 + (i & 3), 2 + (i & 3), S(i)))
    e("v_add_f32 v2, v2, v3\nv_add_f32 v4, v4, v5\nv_add_f32 v2, v2, v4\nv_mov_b32 v3, v2\ns_nop 1\nv_permlane32_swap_b32 v2, v3\ns_nop 1\nv_add_f32 v2, v2, v3\nv_rcp_f32 v2, v2\ns_nop 0")
    for i in range(16): e("v_mul_f32 %s, %s, v2" % (S(i), S(i)))
    for i in range(8): e("v_cvt_pk_bf16_f32 v%d, %s, %s" % (PP + i, S(2 * i), S(2 * i + 1)))
    e("s_waitcnt lgkmcnt(0)\ns_nop 0")
    def ostore(t):
        for u in range(2):
            f = 2 * t + u
            e("buffer_store_dwordx4 %s, v%d, %s, s%d offen offset:%d sc1" % (vr(QP + 4 * f, 4), VL16, srd('ws'), 80 if f < 4 else 94, (f & 3) * 1024))
    e("s_add_u32 s94, s80, 4096")
    for t in range(4):
        for s in range(2): e(mfma(ACC + 16 * t, ar(AV + 8 * t + 4 * s, 4), vr(PP + 4 * s, 4), s == 0))
    e("s_waitcnt vmcnt(1)\ns_barrier")
    for t in range(4): em(rdA(0, t, 0, 0))
    for t in range(4):
        cvt(t, QP); ostore(t)
    stamp()
    def flag1():
        e("s_waitcnt vmcnt(0)")
        stamp()
        e("s_mov_b32 s87, 100000\nLc0:\nv_readfirstlane_b32 s36, v%d\ns_cmp_eq_u32 s36, 32\ns_cbranch_scc1 Lc1" % VCNT)
        e("buffer_load_dword v%d, v%d, %s, s75 offen sc1\ns_waitcnt vmcnt(0)\ns_sub_u32 s87, s87, 1\ns_cmp_lg_u32 s87, 0\ns_cbranch_scc1 Lc0\nLc1:" % (VCNT, VZERO, srd('dbg')))
        e("s_mov_b64 exec, 15\nbuffer_store_dword v%d, v%d, %s, 0 offen sc1\ns_mov_b64 exec, -1" % (VONE, VF1, srd('ws')))
    def poll(mask, lab):
        e("s_mov_b32 s87, 100000\n%s0:\nbuffer_load_dword v%d, v%d, %s, 0 offen sc1\ns_waitcnt vmcnt(0)" % (lab, VPV, VPOLL, srd('ws')))
        e("v_cmp_eq_u32 vcc, 1, v%d\ns_sub_u32 s87, s87, 1\ns_cmp_eq_u32 s87, 0\ns_cbranch_scc1 %s1" % (VPV, lab))
        e("s_and_b32 s36, vcc_lo, 0x%x\ns_cmp_lg_u32 s36, 0x%x\ns_cbranch_scc1 %s0\n%s1:" % (mask, mask, lab, lab))
    for n in range(32):
        i, ks, st = n >> 3, n & 7, n & 1
        if n == flagpos: flag1()
        if n == 8:
            poll(0xf, "Lp")
            stamp()
            for ii in range(1, 4):
                e("s_add_u32 s94, s%d, 4096" % (80 + ii))
                for f in range(8):
                    e("buffer_load_dwordx4 %s, v%d, %s, s%d offen offset:%d sc1" % (ar(AO + 32 * (ii - 1) + 4 * f, 4), VL16, srd('ws'), (80 + ii) if f < 4 else 94, (f & 3) * 1024))
            if defer13: em(unit(13))
        ex = 8 if defer13 else 0
        if n >= 8: e("s_waitcnt vmcnt(%d)" % (31 - n + ex))
        if n == 8: stamp()
        b = vr(QP + 4 * ks, 4) if i == 0 else ar(AO + 32 * (i - 1) + 4 * ks, 4)
        for t in range(4):
            if n == 31: e("s_waitcnt lgkmcnt(%d)" % (6 - 2 * t))
            else: e("s_waitcnt lgkmcnt(6)")
            e(mfma(ACC + 16 * t, vr(FA[st] + 4 * t, 4), b, n == 0))
            if n == 23 and t == 0 and defer13: e("s_waitcnt vmcnt(0)\ns_barrier")
            if n < 31: em(rdA(st ^ 1, t, (10 + ((n + 1) >> 3)) % 5, (n + 1) & 7))
    stamp()
    e("s_add_u32 s94, s84, 4096\ns_nop 7")
    for t in range(4):
        cvt(t, QP)
        for u in range(2):
            f = 2 * t + u
            e("buffer_store_dwordx4 %s, v%d, %s, s%d offen offset:%d sc1" % (vr(QP + 4 * f, 4), VL16, srd('ws'), 84 if f < 4 else 94, (f & 3) * 1024))
    e("s_waitcnt vmcnt(0)")
    stamp()
    e("s_mov_b64 exec, 0xff\nbuffer_store_dword v%d, v%d, %s, 0 offen sc1\ns_mov_b64 exec, -1" % (VONE, VF2, srd('ws')))
    poll(0xff00, "Lq")
    stamp()
    for g in range(8):
        if g: e("s_add_u32 s85, s85, 32768")
        e("buffer_load_dwordx4 %s, v%d, %s, s85 offen sc1" % (vr(80 + 4 * g, 4), VL16, srd('ws')))
    e("s_mov_b32 s36, 0xffff0000")
    for g in range(8):
        e("s_waitcnt vmcnt(%d)" % (7 - g))
        d = 120 if g == 0 else 128
        for i in range(4):
            e("v_lshlrev_b32 v%d, 16, v%d\nv_and_b32 v%d, s36, v%d" % (d + 2 * i, 80 + 4 * g + i, d + 2 * i + 1, 80 + 4 * g + i))
        if g:
            for i in range(4): e("v_pk_add_f32 %s, %s, %s" % (vr(120 + 2 * i, 2), vr(120 + 2 * i, 2), vr(128 + 2 * i, 2)))
    for i in range(4): e("v_cvt_pk_bf16_f32 v%d, v%d, v%d" % (136 + i, 120 + 2 * i, 121 + 2 * i))
    e("buffer_store_dwordx4 v[136:139], v%d, %s, 0 offen" % (VOUT, srd('out')))
    if stamps:
        stamp()
        e("s_waitcnt vmcnt(0)")
        stamp()
        e("s_waitcnt lgkmcnt(0)\nv_mov_b32 v2, s88")
        for i in range(nst[0]): e("v_mov_b32 v%d, s%d" % (3 + i, 4 + 2 * i))
        e("s_lshl_b32 s36, s2, 8\ns_lshl_b32 s37, s3, 6\ns_add_u32 s36, s36, s37\ns_add_u32 s36, s36, %d\ns_mov_b64 exec, 1" % STAMP_OFF)
        for i in range(4): e("buffer_store_dwordx4 %s, v%d, %s, s36 offen offset:%d" % (vr(2 + 4 * i, 4), VZERO, srd('ws'), 16 * i))
        e("s_waitcnt vmcnt(0)")
    e("Lend:\ns_endpgm")
    e('.section .rodata,"a"\n.p2align 6\n.amdhsa_kernel %s_kernel\n  .amdhsa_next_free_vgpr 512\n  .amdhsa_next_free_sgpr 102\n  .amdhsa_accum_offset 256\n  .amdhsa_group_segment_fixed_size 0\n  .amdhsa_kernarg_size 104\n  .amdhsa_user_sgpr_count 2\n  .amdhsa_user_sgpr_kernarg_segment_ptr 1\n  .amdhsa_system_sgpr_workgroup_id_x 1\n.end_amdhsa_kernel' % NAME)
    return "\n".join(L) + "\n"

if __name__ == "__main__":
    import ast
    kw = {}
    for a in sys.argv[2:]:
        k, v = a.split("="); kw[k] = ast.literal_eval(v)
    open(sys.argv[1], "w").write(gen(**kw))
```
